```python
import torch

def _softmax(x, axis=-1):
    return torch.softmax(x, dim=axis)
def _gelu(x):
    return torch.nn.functional.gelu(x, approximate="tanh")
def _silu(x):
    return torch.nn.functional.silu(x)
def _sigmoid(x):
    return torch.sigmoid(x)
def _layernorm(x, axis=-1, eps=1e-5):
    m = x.mean(dim=axis, keepdim=True)
    v = x.var(dim=axis, keepdim=True, unbiased=False)
    return (x - m) / torch.sqrt(v + eps)
def _scatter_add(tgt, idx, src, axis=0):
    return tgt.clone().index_add_(axis, idx, src)
def _segment_sum(src, seg, n):
    out = torch.zeros((n,) + src.shape[1:], dtype=src.dtype)
    return out.index_add_(0, seg, src)
def _pad(x, pw):
    flat = tuple(v for pair in reversed(pw) for v in pair)
    return torch.nn.functional.pad(x, flat)

kernel_name = 'concat_heads__ssm_conv_s4d__linear_kernel_hedgehog__prompt'

def setup_inputs():

    _w = (lambda a: (lambda t: t.to(torch.bfloat16) if t.is_floating_point() else t)(torch.as_tensor(a)))
    def _A_setup():
        Bsz, L, D, N = 1, 2048, 448, 256
        return {
            "u": _w((lambda *s: torch.randn(*s, dtype=torch.bfloat16) * 0.05)(Bsz, L, D)),
            "log_A_real": _w((lambda *s: torch.randn(*s, dtype=torch.bfloat16) * 6.4)(D, N) * 0.5),
            "A_imag": _w((lambda *s: torch.randn(*s, dtype=torch.bfloat16) * 0.2)(D, N) * 3.14),
            "C_real": _w((lambda *s: torch.randn(*s, dtype=torch.bfloat16) * 0.8)(D, N) / N ** 0.5),
            "C_imag": _w((lambda *s: torch.randn(*s, dtype=torch.bfloat16) * 0.8)(D, N) / N ** 0.5),
            "log_dt": _w((lambda *s: torch.randn(*s, dtype=torch.bfloat16) * 0.2)(D) * 0.5 - 4.0),
            "D_skip": _w((lambda *s: torch.randn(*s, dtype=torch.bfloat16) * 0.2)(D)),
        }
    _A_in = _A_setup()

    def _B_setup():
        B, S, D, H = 1, 2048, 448, 16
        Dh = D // H
        return {
            "x": _w((lambda *s: torch.randn(*s, dtype=torch.bfloat16) * 0.4)(B, S, D)),
            "wqkv": _w((lambda *s: torch.randn(*s, dtype=torch.bfloat16) * 0.4)(D, 3 * D)),
            "w_phi": _w((lambda *s: torch.randn(*s, dtype=torch.bfloat16) * 0.4)(H, Dh, Dh) * (Dh ** -0.5)),
            "wo": _w((lambda *s: torch.randn(*s, dtype=torch.bfloat16) * 0.05)(D, D)),
        }
    _B_in = _B_setup()

    return {
        "A_u": _A_in["u"],
        "A_log_A_real": _A_in["log_A_real"],
        "A_A_imag": _A_in["A_imag"],
        "A_C_real": _A_in["C_real"],
        "A_C_imag": _A_in["C_imag"],
        "A_log_dt": _A_in["log_dt"],
        "A_D_skip": _A_in["D_skip"],
        "B_x": _B_in["x"],
        "B_wqkv": _B_in["wqkv"],
        "B_w_phi": _B_in["w_phi"],
        "B_wo": _B_in["wo"],
    }

def reference(A_u, A_log_A_real, A_A_imag, A_C_real, A_C_imag, A_log_dt, A_D_skip, B_x, B_wqkv, B_w_phi, B_wo):
    def _A_ref(u, log_A_real, A_imag, C_real, C_imag, log_dt, D_skip):
        L = u.shape[1]
        dt = torch.exp(log_dt)
        A = -torch.exp(log_A_real) + 1j * A_imag
        C = (C_real + 1j * C_imag) * dt[:, None]
        pos = (lambda x, dt: x.to(dt))(torch.arange(L), log_dt.dtype)
        P = torch.exp((A * dt[:, None])[:, :, None] * pos[None, None, :])
        K = 2.0 * torch.einsum("dn,dnl->dl", C, P).real
        L2 = 2 * L
        u_t = (lambda x, *d: x.permute(*d))(u, 0, 2, 1)
        Kf = (lambda x, *a, **k: torch.fft.rfft(x.float(), *a, **k))(K, L2)
        Uf = (lambda x, *a, **k: torch.fft.rfft(x.float(), *a, **k))(u_t, L2)
        y = (lambda x, *a, **k: torch.fft.irfft(x, *a, **k).to(torch.bfloat16))(Uf * Kf[None, :, :], L2)[:, :, :L]
        y = (lambda x, *d: x.permute(*d))(y, 0, 2, 1)
        return y + u * D_skip[None, None, :]

    def _B_ref(x, wqkv, w_phi, wo):
        B, S, D = x.shape
        H = 16; Dh = D // H
        qkv = (lambda x, *d: x.permute(*d))((x @ wqkv).reshape(B, S, 3, H, Dh), 2, 0, 3, 1, 4)
        q, k, v = qkv[0], qkv[1], qkv[2]
        pq = torch.einsum("bhsd,hdf->bhsf", q, w_phi)
        pk = torch.einsum("bhsd,hdf->bhsf", k, w_phi)
        phi_q = torch.concatenate([_softmax(pq, axis=-1), _softmax(-pq, axis=-1)], axis=-1)
        phi_k = torch.concatenate([_softmax(pk, axis=-1), _softmax(-pk, axis=-1)], axis=-1)
        kv = torch.einsum("bhsf,bhsd->bhfd", phi_k, v)
        z  = torch.einsum("bhsf->bhf", phi_k)
        num = torch.einsum("bhqf,bhfd->bhqd", phi_q, kv)
        den = torch.einsum("bhqf,bhf->bhq", phi_q, z)[..., None] + 1e-6
        o = num / den
        return (lambda x, *d: x.permute(*d))(o, 0, 2, 1, 3).reshape(B, S, D) @ wo

    a = _A_ref(A_u, A_log_A_real, A_A_imag, A_C_real, A_C_imag, A_log_dt, A_D_skip)
    b = _B_ref(B_x, B_wqkv, B_w_phi, B_wo)
    return torch.concatenate([a, b], axis=-1)
```

```python
WS_UT=0; WS_KR=0x400000; KR_D=67584; WS_WQKVT=0x2800000; WS_WOT=0x2A00000
WS_WPHIT=0x2B00000; WS_KV=0x2C00000; WS_PHIQ=0x2D00000
class G:
    def __init__(s): s.l=[]
    def __call__(s,t):
        for x in t.strip('\n').split('\n'): s.l.append('    '+x.strip())
    def lab(s,n): s.l.append(n+':')
    def text(s): return '\n'.join(s.l)+'\n'
def srd(g,d,ptr_off,nbytes):
    g(f"s_load_dwordx2 s[{d}:{d+1}], s[0:1], {ptr_off}\ns_waitcnt lgkmcnt(0)\ns_and_b32 s{d+1}, s{d+1}, 0xffff\ns_mov_b32 s{d+2}, {nbytes}\ns_mov_b32 s{d+3}, 0x00020000")
def kd(name,vg=128):
    return f""".amdhsa_kernel {name}
  .amdhsa_next_free_vgpr {vg}
  .amdhsa_next_free_sgpr 96
  .amdhsa_accum_offset {vg}
  .amdhsa_group_segment_fixed_size 0
  .amdhsa_kernarg_size 112
  .amdhsa_user_sgpr_count 2
  .amdhsa_user_sgpr_kernarg_segment_ptr 1
  .amdhsa_system_sgpr_workgroup_id_x 1
.end_amdhsa_kernel
"""
def head(name): return f".globl {name}\n.p2align 8\n.type {name},@function\n{name}:\n    s_movk_i32 s90, 0x7fff\n"
```

```python
from common import *
NK=448; B_UT=NK; B_WQ=B_UT+1792; B_WO=B_WQ+1176; B_WP=B_WO+392; B_KV=B_WP+32; K1_GRID=B_KV+128
def gen():
    g=G()
    g(f"s_cmp_ge_u32 s2, {K1_GRID}\ns_cbranch_scc1 k1_end")
    srd(g,8,104,0x10000000)
    g(f"s_cmp_lt_u32 s2, {NK}\ns_cbranch_scc1 k1_kgen")
    g("s_mov_b32 s20, 19173962\nv_mov_b32 v10, 0\nv_mov_b32 v11, 0")
    g(f"s_cmp_lt_u32 s2, {B_WQ}\ns_cbranch_scc1 k1_ut\ns_cmp_lt_u32 s2, {B_WO}\ns_cbranch_scc1 k1_wq\ns_cmp_lt_u32 s2, {B_WP}\ns_cbranch_scc1 k1_wo\ns_cmp_lt_u32 s2, {B_KV}\ns_cbranch_scc1 k1_wp")
    g(f"s_sub_u32 s3, s2, {B_KV}\ns_lshl_b32 s3, s3, 10\nv_lshlrev_b32 v1, 2, v0\nv_add_u32 v1, s3, v1\nv_add_u32 v1, {WS_KV}, v1\nbuffer_store_dword v10, v1, s[8:11], 0 offen\ns_branch k1_end")
    g.lab("k1_ut")
    srd(g,12,0,1835008)
    g(f"""s_sub_u32 s3, s2, {B_UT}
    s_lshl_b32 s3, s3, 8
    v_add_u32 v1, s3, v0
    v_lshrrev_b32 v2, 10, v1
    v_and_b32 v3, 1023, v1
    v_mul_u32_u24 v4, 1792, v3
    v_lshl_add_u32 v4, v2, 1, v4
    v_add_u32 v5, 896, v4
    v_lshlrev_b32 v6, 13, v2
    v_lshl_add_u32 v6, v3, 2, v6
    buffer_store_dword v10, v6, s[8:11], 0 offen
    v_add_u32 v6, 4096, v6
    s_branch k1_gather""")
    for nm,b0,ptr,nb,ld,dst in (("k1_wq",B_WQ,64,1204224,1344,WS_WQKVT),("k1_wo",B_WO,80,401408,448,WS_WOT)):
        g.lab(nm)
        srd(g,12,ptr,nb)
        g(f"""s_sub_u32 s3, s2, {b0}
        s_lshl_b32 s3, s3, 8
        v_add_u32 v1, s3, v0
        v_mul_hi_u32 v2, v1, s20
        v_mul_u32_u24 v3, 224, v2
        v_sub_u32 v3, v1, v3
        v_mul_u32_u24 v4, {ld*4}, v3
        v_lshl_add_u32 v4, v2, 1, v4
        v_add_u32 v5, {ld*2}, v4
        v_lshlrev_b32 v6, 2, v1
        v_add_u32 v6, {dst}, v6
        s_branch k1_gather""")
    g.lab("k1_wp")
    srd(g,12,72,25088)
    g(f"""s_sub_u32 s3, s2, {B_WP}
    s_lshl_b32 s3, s3, 8
    v_add_u32 v1, s3, v0
    v_lshrrev_b32 v2, 9, v1
    v_bfe_u32 v3, v1, 4, 5
    v_and_b32 v7, 15, v1
    v_mul_u32_u24 v4, 1568, v2
    v_mul_u32_u24 v8, 112, v7
    v_add_u32 v4, v4, v8
    v_lshl_add_u32 v4, v3, 1, v4
    v_add_u32 v5, 56, v4
    v_cmp_lt_u32 vcc, 27, v3
    s_mov_b64 s[4:5], vcc
    v_cmp_lt_u32 vcc, 13, v7
    s_or_b64 vcc, vcc, s[4:5]
    v_mov_b32 v8, 0x40000000
    s_nop 1
    v_cndmask_b32 v4, v4, v8, vcc
    v_cndmask_b32 v5, v5, v8, vcc
    v_lshlrev_b32 v6, 2, v1
    v_add_u32 v6, {WS_WPHIT}, v6""")
    g.lab("k1_gather")
    g("""buffer_load_ushort v10, v4, s[12:15], 0 offen
    buffer_load_ushort v11, v5, s[12:15], 0 offen
    s_waitcnt vmcnt(0)
    v_lshl_or_b32 v10, v11, 16, v10
    buffer_store_dword v10, v6, s[8:11], 0 offen
    s_branch k1_end""")
    g.lab("k1_kgen")
    srd(g,12,8,229376); srd(g,16,16,229376); srd(g,24,24,229376); srd(g,28,32,229376); srd(g,32,40,896)
    g("""s_lshl_b32 s3, s2, 1
    v_mov_b32 v1, s3
    buffer_load_ushort v2, v1, s[32:35], 0 offen
    v_and_b32 v3, 15, v0
    v_lshrrev_b32 v4, 4, v0
    s_lshl_b32 s3, s2, 9
    v_lshrrev_b32 v5, 6, v0
    v_lshlrev_b32 v5, 7, v5
    v_bfe_u32 v6, v0, 4, 2
    v_lshl_add_u32 v5, v6, 1, v5
    v_add_u32 v5, s3, v5
    s_waitcnt vmcnt(0)
    v_lshlrev_b32 v2, 16, v2
    v_mul_f32 v2, 0x3fb8aa3b, v2
    v_exp_f32 v2, v2
    s_nop 0
    v_bfe_u32 v7, v2, 16, 1
    v_add3_u32 v2, v2, v7, s90
    v_and_b32 v2, 0xffff0000, v2
    v_and_b32 v7, 7, v3
    v_lshrrev_b32 v8, 3, v3
    v_lshl_add_u32 v20, v8, 7, v7
    v_and_b32 v7, 3, v3
    v_lshrrev_b32 v8, 2, v3
    v_lshlrev_b32 v8, 7, v8
    v_lshl_add_u32 v21, v7, 1, v8
    v_add_u32 v21, 0x100, v21
    v_and_b32 v7, 1, v3
    v_bfe_u32 v8, v3, 1, 2
    v_lshlrev_b32 v8, 7, v8
    v_lshl_add_u32 v22, v7, 2, v8
    v_add_u32 v22, 0x200, v22
    v_cmp_lt_u32 vcc, 7, v3
    v_lshlrev_b32 v7, 7, v3
    v_add_u32 v7, 0x400, v7
    v_mov_b32 v8, 0x800
    v_cndmask_b32 v21, v21, v22, vcc
    v_cndmask_b32 v22, v7, v8, vcc
    v_lshlrev_b32 v23, 3, v3
    v_cvt_f32_u32 v20, v20
    v_cvt_f32_u32 v21, v21
    v_cvt_f32_u32 v22, v22
    v_cvt_f32_u32 v23, v23""")
    for r in range(40,52): g(f"v_mov_b32 v{r}, 0")
    g("s_mov_b32 s6, 0")
    g.lab("k1_loop")
    g("""buffer_load_ushort v24, v5, s[12:15], 0 offen
    buffer_load_ushort v25, v5, s[16:19], 0 offen
    buffer_load_ushort v26, v5, s[24:27], 0 offen
    buffer_load_ushort v27, v5, s[28:31], 0 offen
    v_add_u32 v5, 8, v5
    s_waitcnt vmcnt(0)
    v_lshlrev_b32 v24, 16, v24
    v_mul_f32 v24, 0x3fb8aa3b, v24
    v_exp_f32 v24, v24
    v_lshlrev_b32 v25, 16, v25
    v_lshlrev_b32 v26, 16, v26
    v_lshlrev_b32 v27, 16, v27
    v_bfe_u32 v7, v24, 16, 1
    v_add3_u32 v24, v24, v7, s90
    v_and_b32 v24, 0xffff0000, v24
    v_mul_f32 v24, v24, v2
    v_mul_f32 v25, v25, v2
    v_mul_f32 v26, v26, v2
    v_mul_f32 v27, v27, v2""")
    def E(p,dr,di):
        g(f"""v_mul_f32 v28, v24, v{p}
        v_mul_f32 v28, 0xbfb8aa3b, v28
        v_exp_f32 v28, v28
        v_mul_f32 v29, v25, v{p}
        v_mul_f32 v29, 0x3e22f983, v29
        v_fract_f32 v29, v29
        v_cos_f32 v30, v29
        v_sin_f32 v31, v29
        s_nop 0
        v_mul_f32 v{dr}, v28, v30
        v_mul_f32 v{di}, v28, v31""")
    E(23,32,33)
    for t in range(3):
        E(20+t,34,35)
        g(f"""v_mul_f32 v36, v27, v35
        v_fma_f32 v36, v26, v34, -v36
        v_mul_f32 v37, v26, v35
        v_fma_f32 v37, v27, v34, v37
        v_sub_f32 v37, 0, v37
        s_nop 1
        v_mfma_f32_16x16x4_f32 v[{40+4*t}:{43+4*t}], v36, v32, v[{40+4*t}:{43+4*t}]
        v_mfma_f32_16x16x4_f32 v[{40+4*t}:{43+4*t}], v37, v33, v[{40+4*t}:{43+4*t}]""")
    g("""s_add_u32 s6, s6, 1
    s_cmp_lt_u32 s6, 16
    s_cbranch_scc1 k1_loop
    s_nop 7
    s_nop 7
    s_nop 7""")
    g("""v_lshrrev_b32 v7, 6, v0
    v_mul_u32_u24 v7, 3072, v7
    v_bfe_u32 v8, v0, 4, 2
    v_lshl_add_u32 v7, v8, 8, v7
    v_lshl_add_u32 v7, v3, 2, v7""")
    for t in range(3):
        for r in range(4): g(f"ds_write_b32 v7, v{40+4*t+r} offset:{t*1024+r*64}")
    g("s_waitcnt lgkmcnt(0)\ns_barrier")
    g("v_lshlrev_b32 v7, 2, v0")
    for it in range(3):
        g(f"""ds_read_b32 v24, v7 offset:{it*1024}
        ds_read_b32 v25, v7 offset:{it*1024+3072}
        ds_read_b32 v26, v7 offset:{it*1024+6144}
        ds_read_b32 v27, v7 offset:{it*1024+9216}
        s_waitcnt lgkmcnt(0)
        v_add_f32 v24, v24, v25
        v_add_f32 v26, v26, v27
        v_add_f32 v24, v24, v26
        v_add_f32 v24, v24, v24
        ds_write_b32 v7, v24 offset:{12288+it*1024}""")
    g(f"s_waitcnt lgkmcnt(0)\ns_barrier\ns_mul_i32 s3, s2, {KR_D}\ns_add_u32 s3, s3, {WS_KR}\ns_mov_b32 s6, 0")
    g.lab("k1_exp")
    g("""v_add_u32 v1, s6, v0
    s_mov_b32 s21, 16268816
    v_mul_hi_u32 v4, v1, s21
    v_mul_u32_u24 v6, 264, v4
    v_sub_u32 v6, v1, v6
    v_lshl_add_u32 v6, v6, 3, v4
    v_subrev_u32 v6, 64, v6""")
    for i in range(8):
        g(f"""v_subrev_u32 v8, {i}, v6
        v_cvt_f32_u32 v9, v8
        v_bfe_u32 v12, v9, 16, 1
        v_add3_u32 v9, v9, v12, s90
        v_and_b32 v9, 0xffff0000, v9
        v_cvt_u32_f32 v9, v9
        v_or_b32 v12, 1, v9
        v_ffbh_u32 v12, v12
        v_sub_u32 v12, 24, v12
        v_max_i32 v12, 0, v12
        v_add_u32 v13, 7, v12
        v_lshlrev_b32 v13, v13, 1
        v_cmp_gt_u32 vcc, 0x100, v9
        v_cndmask_b32 v13, v13, 0, vcc
        v_sub_u32 v13, v9, v13
        v_and_b32 v14, 7, v13
        v_lshrrev_b32 v14, v12, v14
        v_lshrrev_b32 v15, 7, v13
        v_lshrrev_b32 v16, v12, 8
        v_mul_u32_u24 v15, v15, v16
        v_add_u32 v14, v14, v15
        v_lshlrev_b32 v15, 3, v12
        v_cmp_eq_u32 vcc, 0, v12
        v_add_u32 v15, 8, v15
        v_cndmask_b32 v15, v15, 0, vcc
        v_add_u32 v14, v14, v15
        v_bfe_u32 v15, v13, 3, 4
        v_lshl_add_u32 v14, v14, 4, v15
        v_lshlrev_b32 v14, 2, v14
        ds_read_b32 v{24+i}, v14 offset:12288
        v_cmp_gt_i32 vcc, 0, v8
        s_waitcnt lgkmcnt(0)
        v_cndmask_b32 v{24+i}, v{24+i}, 0, vcc""")
    for i in range(8):
        g(f"""v_bfe_u32 v12, v{24+i}, 16, 1
        v_add3_u32 v12, v{24+i}, v12, s90
        v_and_b32 v12, 0xffff0000, v12
        v_sub_f32 v{32+i}, v{24+i}, v12
        v_mov_b32 v{24+i}, v12""")
    for i in range(4):
        g(f"v_cvt_pk_bf16_f32 v{40+i}, v{24+2*i}, v{25+2*i}\nv_cvt_pk_bf16_f32 v{44+i}, v{32+2*i}, v{33+2*i}")
    g(f"""v_lshlrev_b32 v1, 4, v1
    v_add_u32 v1, s3, v1
    v_cmp_gt_u32 vcc, 2112, v6
    s_add_u32 s7, s6, 0
    v_add_u32 v12, s6, v0
    v_cmp_gt_u32 vcc, 2112, v12
    s_and_saveexec_b64 s[22:23], vcc
    s_cbranch_execz k1_skip
    buffer_store_dwordx4 v[40:43], v1, s[8:11], 0 offen
    buffer_store_dwordx4 v[44:47], v1, s[8:11], 0 offen offset:0
    """.replace("offset:0\n","offset:0\n"))
    g.l[-2]="    v_add_u32 v1, 33792, v1"; g.l[-1]="    buffer_store_dwordx4 v[44:47], v1, s[8:11], 0 offen"
    g.lab("k1_skip")
    g("s_mov_b64 exec, s[22:23]\ns_add_u32 s6, s6, 256\ns_cmp_lt_u32 s6, 2112\ns_cbranch_scc1 k1_exp")
    g.lab("k1_end"); g("s_endpgm")
    return head("k1_kernel")+g.text()
```

```python
from common import *
def rne(g,v,t):
    g(f"v_bfe_u32 v{t}, v{v}, 16, 1\nv_add3_u32 v{v}, v{v}, v{t}, s90\nv_and_b32 v{v}, 0xffff0000, v{v}")
def conv(g):
    srd(g,12,0,1835008); srd(g,16,48,896); srd(g,24,88,3670016)
    g(f"""v_and_b32 v1, 31, v0
    v_bfe_u32 v2, v0, 5, 1
    v_lshrrev_b32 v3, 6, v0
    v_lshlrev_b32 v3, 3, v3
    v_sub_u32 v4, v1, v3
    v_lshlrev_b32 v4, 7, v4
    v_lshl_add_u32 v4, v2, 4, v4
    s_lshl_b32 s3, s2, 13
    s_add_u32 s3, s3, {WS_UT+4096}
    v_add_u32 v4, s3, v4
    v_and_b32 v5, 7, v1
    v_mul_u32_u24 v5, 264, v5
    v_lshrrev_b32 v6, 3, v1
    v_add_u32 v5, v5, v6
    v_sub_u32 v5, v5, v2
    v_lshl_add_u32 v5, v3, 3, v5
    v_lshlrev_b32 v5, 4, v5
    s_mul_i32 s3, s2, {KR_D}
    s_add_u32 s3, s3, {WS_KR+128}
    v_add_u32 v5, s3, v5""")
    for r in range(64,96): g(f"v_mov_b32 v{r}, 0")
    g("s_mov_b32 s6, 0")
    g.lab("k2_cl")
    for ks in range(4):
        g(f"buffer_load_dwordx4 v[{16+4*ks}:{19+4*ks}], v4, s[8:11], 0 offen offset:{32*ks}")
    g("v_add_u32 v6, 0xffffffa0, v5\nv_add_u32 v7, 33792, v6")
    for ks in range(4):
        for mt in range(2):
            for hl in range(2):
                k=(ks*4+mt*2+hl)
                g(f"buffer_load_dwordx4 v[{96+4*k}:{99+4*k}], v{6+hl}, s[8:11], 0 offen offset:{96-32*ks+64*mt}")
    g("s_waitcnt vmcnt(0)")
    for ks in range(4):
        for mt in range(2):
            for hl in range(2):
                k=(ks*4+mt*2+hl)
                g(f"v_mfma_f32_32x32x16_bf16 v[{64+16*mt}:{79+16*mt}], v[{96+4*k}:{99+4*k}], v[{16+4*ks}:{19+4*ks}], v[{64+16*mt}:{79+16*mt}]")
    g("v_add_u32 v4, 0xffffff80, v4\nv_add_u32 v5, 0x80, v5\ns_add_u32 s6, s6, 1\ns_cmp_lt_u32 s6, 8\ns_cbranch_scc1 k2_cl\ns_nop 7\ns_nop 7\ns_nop 7")
    g("v_lshrrev_b32 v3, 6, v0\nv_lshlrev_b32 v3, 13, v3\nv_lshl_add_u32 v3, v1, 2, v3\nv_lshl_add_u32 v3, v2, 9, v3")
    for mt in range(2):
        for r in range(16):
            row=32*mt+(r&3)+8*(r>>2)
            g(f"ds_write_b32 v3, v{64+16*mt+r} offset:{row*128}")
    g("""s_waitcnt lgkmcnt(0)
    s_barrier
    s_lshl_b32 s3, s2, 1
    v_mov_b32 v8, s3
    buffer_load_ushort v9, v8, s[16:19], 0 offen
    v_and_b32 v1, 63, v0
    v_lshrrev_b32 v2, 6, v0
    v_lshlrev_b32 v3, 7, v1
    v_lshl_add_u32 v3, v2, 2, v3
    v_lshl_add_u32 v4, v2, 6, v1
    v_mul_u32_u24 v5, 896, v4
    v_add_u32 v5, s3, v5
    v_lshlrev_b32 v4, 1, v5
    v_subrev_u32 v4, s3, v4
    s_waitcnt vmcnt(0)
    v_lshlrev_b32 v9, 16, v9""")
    for j in range(8):
        g(f"""buffer_load_ushort v10, v5, s[12:15], 0 offen
        ds_read_b32 v11, v3 offset:{16*j}
        ds_read_b32 v12, v3 offset:{16*j+8192}
        ds_read_b32 v13, v3 offset:{16*j+16384}
        ds_read_b32 v14, v3 offset:{16*j+24576}
        s_waitcnt vmcnt(0) lgkmcnt(0)
        v_add_f32 v11, v11, v12
        v_add_f32 v13, v13, v14
        v_add_f32 v11, v11, v13
        v_lshlrev_b32 v10, 16, v10
        v_mul_f32 v10, v10, v9""")
        rne(g,11,12); rne(g,10,12)
        g(f"v_add_f32 v11, v11, v10\nv_cvt_pk_bf16_f32 v11, v11, v11\nbuffer_store_short v11, v4, s[24:27], 0 offen\nv_add_u32 v5, {256*896}, v5\nv_add_u32 v4, {256*1792}, v4")
```

```python
from common import *
from k2a import rne
QL=0; VT=15360; PH=15360+7168
def xred(g,v,op,t):
    for x in (60,61):
        g(f"ds_bpermute_b32 v{t}, v{x}, v{v}\ns_waitcnt lgkmcnt(0)\n{op} v{v}, v{v}, v{t}")
def b1(g):
    srd(g,12,56,1835008)
    g(f"""s_sub_u32 s4, s2, 448
    s_lshr_b32 s5, s4, 2
    s_and_b32 s4, s4, 3
    v_and_b32 v1, 15, v0
    v_bfe_u32 v2, v0, 4, 2
    v_lshrrev_b32 v3, 6, v0
    s_nop 0
    v_readfirstlane_b32 s7, v3
    v_mov_b32 v10, 0
    v_mov_b32 v11, 0
    v_lshlrev_b32 v4, 2, v0
    ds_write_b32 v4, v10 offset:{QL}
    v_mul_u32_u24 v4, 240, v0
    ds_write_b64 v4, v[10:11] offset:224
    s_mul_i32 s3, s5, {32*896}
    v_mul_u32_u24 v4, 896, v1
    v_lshl_add_u32 v4, v2, 4, v4
    v_add_u32 v4, s3, v4
    s_mov_b32 s6, s7
    s_waitcnt lgkmcnt(0)
    s_barrier""")
    g.lab("b1_tl")
    g(f"""s_min_u32 s20, s6, 20
    s_mul_hi_u32 s21, s20, 0x24924925
    s_mul_i32 s22, s21, 7
    s_sub_u32 s22, s20, s22
    s_mul_i32 s23, s21, 448
    s_mul_i32 s3, s4, 112
    s_add_u32 s23, s23, s3
    s_lshl_b32 s3, s22, 4
    s_add_u32 s23, s23, s3
    s_mul_i32 s23, s23, 896
    s_add_u32 s23, s23, {WS_WQKVT}
    v_mul_u32_u24 v5, 896, v1
    v_lshl_add_u32 v5, v2, 4, v5
    v_add_u32 v5, s23, v5""")
    for r in range(16,24): g(f"v_mov_b32 v{r}, 0")
    for k in range(14):
        g(f"""buffer_load_dwordx4 v[24:27], v4, s[12:15], 0 offen offset:{64*k}
        v_add_u32 v6, {16*896}, v4
        buffer_load_dwordx4 v[28:31], v6, s[12:15], 0 offen offset:{64*k}
        buffer_load_dwordx4 v[32:35], v5, s[8:11], 0 offen offset:{64*k}
        s_waitcnt vmcnt(0)
        v_mfma_f32_16x16x32_bf16 v[16:19], v[24:27], v[32:35], v[16:19]
        v_mfma_f32_16x16x32_bf16 v[20:23], v[28:31], v[32:35], v[20:23]""")
    g("s_nop 7\ns_nop 7\ns_cmp_eq_u32 s21, 2\ns_cbranch_scc1 b1_v")
    g(f"""s_mul_i32 s3, s21, 7680
    s_lshl_b32 s22, s22, 5
    s_add_u32 s3, s3, s22
    v_mul_u32_u24 v6, 960, v2
    v_lshl_add_u32 v6, v1, 1, v6
    v_add_u32 v6, s3, v6""")
    for m in range(2):
        for r in range(4):
            g(f"v_cvt_pk_bf16_f32 v24, v{16+4*m+r}, v{16+4*m+r}\nds_write_b16 v6, v24 offset:{(16*m+r)*240}")
    g("s_branch b1_nx")
    g.lab("b1_v")
    g(f"s_lshl_b32 s3, s22, 10\nv_lshlrev_b32 v6, 6, v1\nv_lshl_add_u32 v6, v2, 3, v6\nv_add_u32 v6, s3, v6")
    for m in range(2):
        g(f"v_cvt_pk_bf16_f32 v24, v{16+4*m}, v{17+4*m}\nv_cvt_pk_bf16_f32 v25, v{18+4*m}, v{19+4*m}\nds_write_b64 v6, v[24:25] offset:{VT+32*m}")
    g.lab("b1_nx")
    g("s_add_u32 s6, s6, 4\ns_cmp_lt_u32 s6, 24\ns_cbranch_scc1 b1_tl\ns_waitcnt lgkmcnt(0)\ns_barrier")
    g(f"""v_and_b32 v60, 63, v0
    v_xor_b32 v61, 32, v60
    v_xor_b32 v60, 16, v60
    v_lshlrev_b32 v60, 2, v60
    v_lshlrev_b32 v61, 2, v61
    s_lshl_b32 s3, s4, 2
    s_add_u32 s20, s3, s7
    s_lshl_b32 s3, s20, 11
    s_add_u32 s3, s3, {WS_WPHIT}
    v_lshlrev_b32 v5, 6, v1
    v_lshl_add_u32 v5, v2, 4, v5
    v_add_u32 v5, s3, v5
    buffer_load_dwordx4 v[40:43], v5, s[8:11], 0 offen
    buffer_load_dwordx4 v[44:47], v5, s[8:11], 0 offen offset:1024
    s_mul_i32 s3, s7, 56
    v_mul_u32_u24 v6, 240, v1
    v_lshl_add_u32 v6, v2, 4, v6
    v_add_u32 v6, s3, v6
    v_cmp_eq_u32 s[22:23], 3, v2
    v_lshlrev_b32 v7, 3, v2""")
    for part in range(2):
        for st in range(2):
            o=part*7680+st*3840
            g(f"""ds_read_b64 v[24:25], v6 offset:{o}
            ds_read_b64 v[26:27], v6 offset:{o+8}
            s_waitcnt vmcnt(0) lgkmcnt(0)
            v_mfma_f32_16x16x32_bf16 v[16:19], v[40:43], v[24:27], 0
            v_mfma_f32_16x16x32_bf16 v[20:23], v[44:47], v[24:27], 0
            s_nop 7""")
            for r in range(8): rne(g,16+r,28)
            g("v_max3_f32 v28, v16, v17, v18\nv_max_f32 v28, v28, v19\nv_min3_f32 v29, v16, v17, v18\nv_min_f32 v29, v29, v19")
            g("v_max3_f32 v30, v20, v21, v22\nv_max3_f32 v30, v30, v23, v28\nv_min3_f32 v31, v20, v21, v22\nv_min3_f32 v31, v31, v23, v29\nv_cndmask_b32 v28, v30, v28, s[22:23]\nv_cndmask_b32 v29, v31, v29, s[22:23]")
            xred(g,28,"v_max_f32",30); xred(g,29,"v_min_f32",30)
            g("v_mov_b32 v30, 0\nv_mov_b32 v31, 0")
            for r in range(8):
                g(f"v_sub_f32 v{32+r}, v{16+r}, v28\nv_sub_f32 v{48+r}, v29, v{16+r}\nv_mul_f32 v{32+r}, 0x3fb8aa3b, v{32+r}\nv_mul_f32 v{48+r}, 0x3fb8aa3b, v{48+r}\nv_exp_f32 v{32+r}, v{32+r}\nv_exp_f32 v{48+r}, v{48+r}\ns_nop 0")
                if r>=4: g(f"v_cndmask_b32 v{32+r}, v{32+r}, 0, s[22:23]\nv_cndmask_b32 v{48+r}, v{48+r}, 0, s[22:23]")
                g(f"v_add_f32 v30, v30, v{32+r}\nv_add_f32 v31, v31, v{48+r}")
            xred(g,30,"v_add_f32",28); xred(g,31,"v_add_f32",28)
            g("v_rcp_f32 v30, v30\nv_rcp_f32 v31, v31\ns_nop 0")
            if part==0:
                g(f"s_lshl_b32 s3, s5, 5\nv_add_u32 v8, {16*st}, v1\nv_add_u32 v8, s3, v8\nv_lshlrev_b32 v8, 11, v8\ns_lshl_b32 s3, s20, 7\ns_add_u32 s3, s3, {WS_PHIQ}\nv_add_u32 v8, s3, v8\nv_add_u32 v8, v8, v7"); es=2
            else:
                g(f"s_lshl_b32 s3, s7, 12\nv_lshlrev_b32 v8, 1, v1\nv_add_u32 v8, s3, v8\nv_lshl_add_u32 v8, v2, 8, v8"); es=64
            g(f"v_add_u32 v9, {(56-28)*es}, v8\nv_cndmask_b32 v9, v8, v9, s[22:23]\nv_add_u32 v10, {4*es}, v8\nv_cndmask_b32 v10, v8, v10, s[22:23]")
            for r in range(8):
                a=8 if r<4 else 9; b=8 if r<4 else 10; f=(r&3)+16*(r>>2)
                g(f"v_mul_f32 v{32+r}, v{32+r}, v30\nv_mul_f32 v{48+r}, v{48+r}, v31\nv_cvt_pk_bf16_f32 v{32+r}, v{32+r}, v{32+r}\nv_cvt_pk_bf16_f32 v{48+r}, v{48+r}, v{48+r}")
                if part==0: g(f"buffer_store_short v{32+r}, v{a}, s[8:11], 0 offen offset:{f*2}\nbuffer_store_short v{48+r}, v{b}, s[8:11], 0 offen offset:{(f+28)*2}")
                else: g(f"ds_write_b16 v{a}, v{32+r} offset:{PH+st*32+f*64}\nds_write_b16 v{b}, v{48+r} offset:{PH+st*32+(f+28)*64}")
    g(f"""s_waitcnt lgkmcnt(0)
    s_barrier
    s_lshl_b32 s3, s7, 12
    v_lshlrev_b32 v5, 6, v1
    v_lshl_add_u32 v5, v2, 4, v5
    v_add_u32 v6, s3, v5
    s_mul_i32 s3, s7, {28*64}
    v_add_u32 v5, s3, v5
    ds_read_b128 v[32:35], v5 offset:{VT}
    ds_read_b128 v[36:39], v5 offset:{VT+1024}
    v_cmp_lt_u32 vcc, 11, v1
    v_mov_b32 v8, 0x3f803f80
    s_lshl_b32 s3, s20, 13
    s_add_u32 s3, s3, {WS_KV}
    v_lshlrev_b32 v7, 9, v2
    v_lshl_add_u32 v7, v1, 2, v7
    v_add_u32 v7, s3, v7
    s_waitcnt lgkmcnt(0)""")
    for r in range(4): g(f"v_cndmask_b32 v{36+r}, v{36+r}, v8, vcc")
    for ft in range(4):
        g(f"ds_read_b128 v[24:27], v6 offset:{PH+ft*1024}\ns_waitcnt lgkmcnt(0)\nv_mfma_f32_16x16x32_bf16 v[16:19], v[24:27], v[32:35], 0\nv_mfma_f32_16x16x32_bf16 v[20:23], v[24:27], v[36:39], 0\ns_nop 7")
        for dt in range(2):
            for r in range(4): g(f"buffer_atomic_add_f32 v{16+4*dt+r}, v7, s[8:11], 0 offen offset:{r*128+dt*64}")
        g('v_add_u32 v7, 2048, v7')
```

```python
from common import *
from k2a import rne
def gen():
    g=G(); g("s_cmp_ge_u32 s2, 128\ns_cbranch_scc1 k3_end"); srd(g,8,104,0x10000000); srd(g,24,88,3670016)
    g(f"""v_and_b32 v1, 15, v0
    v_bfe_u32 v2, v0, 4, 2
    v_lshrrev_b32 v3, 6, v0
    s_nop 0
    v_readfirstlane_b32 s7, v3
    v_and_b32 v60, 48, v0
    v_or_b32 v60, 12, v60
    v_lshlrev_b32 v60, 2, v60
    s_lshl_b32 s3, s2, 15
    s_add_u32 s3, s3, {WS_PHIQ}
    v_lshlrev_b32 v4, 11, v1
    v_lshl_add_u32 v4, v2, 4, v4
    v_add_u32 v4, s3, v4
    v_lshlrev_b32 v5, 10, v2
    v_lshl_add_u32 v5, v1, 2, v5
    v_add_u32 v5, {WS_KV}, v5
    v_mul_u32_u24 v7, {4*912}, v2
    v_lshl_add_u32 v7, v1, 1, v7
    s_lshl_b32 s6, s7, 2
    s_add_u32 s5, s6, 4""")
    g.lab("k3_h")
    g("s_lshl_b32 s3, s6, 7\nv_add_u32 v8, s3, v4\ns_lshl_b32 s3, s6, 13\nv_add_u32 v9, s3, v5")
    for r in range(16,24): g(f"v_mov_b32 v{r}, 0")
    for ks in range(2):
        g(f"buffer_load_dwordx4 v[24:27], v8, s[8:11], 0 offen offset:{64*ks}")
        for dt in range(2):
            if ks: g(f"v_add_u32 v10, 4096, v9")
            else: g("v_mov_b32 v10, v9")
            for i in range(8): g(f"buffer_load_dword v{32+i}, v10, s[8:11], 0 offen offset:{i*128+dt*64}")
            g("s_waitcnt vmcnt(0)")
            for i in range(4): g(f"v_cvt_pk_bf16_f32 v{28+i}, v{32+2*i}, v{33+2*i}")
            g(f"s_nop 1\nv_mfma_f32_16x16x32_bf16 v[{16+4*dt}:{19+4*dt}], v[24:27], v[28:31], v[{16+4*dt}:{19+4*dt}]")
    g("s_nop 7\ns_mul_i32 s3, s6, 56\nv_add_u32 v10, s3, v7\nv_cmp_gt_u32 vcc, 12, v1")
    for r in range(4):
        g(f"ds_bpermute_b32 v{32+r}, v60, v{20+r}\ns_waitcnt lgkmcnt(0)"); rne(g,32+r,40)
        g(f"v_add_f32 v{32+r}, 0x358637bd, v{32+r}"); rne(g,32+r,40)
        g(f"v_rcp_f32 v{32+r}, v{32+r}")
        for dt in range(2):
            rne(g,16+4*dt+r,40)
            g(f"v_mul_f32 v41, v{16+4*dt+r}, v{32+r}\nv_cvt_pk_bf16_f32 v41, v41, v41")
            if dt: g("s_and_saveexec_b64 s[22:23], vcc")
            g(f"ds_write_b16 v10, v41 offset:{r*912+dt*32}")
            if dt: g("s_mov_b64 exec, s[22:23]")
    g("s_add_u32 s6, s6, 1\ns_cmp_lt_u32 s6, s5\ns_cbranch_scc1 k3_h\ns_waitcnt lgkmcnt(0)\ns_barrier")
    g(f"""v_mul_u32_u24 v4, 912, v1
    v_lshl_add_u32 v4, v2, 4, v4
    s_mul_i32 s3, s7, {112*896}
    s_add_u32 s3, s3, {WS_WOT}
    v_mul_u32_u24 v5, 896, v1
    v_lshl_add_u32 v5, v2, 4, v5
    v_add_u32 v5, s3, v5
    s_mul_i32 s3, s2, {16*1792}
    s_mul_i32 s4, s7, 224
    s_add_u32 s3, s3, s4
    s_add_u32 s3, s3, 896
    v_mul_u32_u24 v6, {4*1792}, v2
    v_lshl_add_u32 v6, v1, 1, v6
    v_add_u32 v6, s3, v6
    s_mov_b32 s6, 0""")
    g.lab("k3_t")
    g("v_mov_b32 v16, 0\nv_mov_b32 v17, 0\nv_mov_b32 v18, 0\nv_mov_b32 v19, 0")
    for k in range(14): g(f"buffer_load_dwordx4 v[{64+4*k}:{67+4*k}], v5, s[8:11], 0 offen offset:{64*k}")
    for k in range(14):
        g(f"ds_read_b128 v[24:27], v4 offset:{64*k}\ns_waitcnt vmcnt({13-k}) lgkmcnt(0)\nv_mfma_f32_16x16x32_bf16 v[16:19], v[24:27], v[{64+4*k}:{67+4*k}], v[16:19]")
    g("s_nop 7")
    for r in range(4): g(f"v_cvt_pk_bf16_f32 v20, v{16+r}, v{16+r}\nv_add_u32 v21, {r*1792}, v6\nbuffer_store_short v20, v21, s[24:27], 0 offen")
    g(f"v_add_u32 v5, {16*896}, v5\nv_add_u32 v6, 32, v6\ns_add_u32 s6, s6, 1\ns_cmp_lt_u32 s6, 7\ns_cbranch_scc1 k3_t")
    g.lab("k3_end"); g("s_endpgm")
    return head("k3_kernel")+g.text()
```

```python
import sys; sys.path.insert(0,'gen')
from common import *
import k1,k2a,k2b,k3
def k2():
    g=G(); g("s_cmp_ge_u32 s2, 704\ns_cbranch_scc1 k2_end"); srd(g,8,104,0x10000000); g("s_cmp_ge_u32 s2, 448\ns_cbranch_scc1 k2_b1"); k2a.conv(g); g("s_branch k2_end"); g.lab("k2_b1"); k2b.b1(g); g.lab("k2_end"); g("s_endpgm")
    return head("k2_kernel")+g.text()
ref=open('concat_heads__ssm_conv_s4d__linear_kernel_hedgehog__prompt.s.ref').read()
hdr=ref[:ref.index('; @launch')]
o=hdr+f"; @launch kernel=k1_kernel grid=({k1.K1_GRID},1,1) block=(256,1,1) lds=16384\n; @launch kernel=k2_kernel grid=(704,1,1) block=(256,1,1) lds=65536\n; @launch kernel=k3_kernel grid=(128,1,1) block=(256,1,1) lds=16384\n"
o+='.amdgcn_target "amdgcn-amd-amdhsa--gfx950"\n.text\n'+k1.gen()+k2()+k3.gen()+'.section .rodata,"a"\n.p2align 6\n'+kd("k1_kernel")+'.p2align 6\n'+kd("k2_kernel",160)+".p2align 6\n"+kd("k3_kernel")
open('concat_heads__ssm_conv_s4d__linear_kernel_hedgehog__prompt.s','w').write(o)
```

```python
from common import *
from k2a import rne
QL=0; VT=15360; PH=15360+7168
def xred(g,v,op,t):
    for x in (60,61):
        g(f"ds_bpermute_b32 v{t}, v{x}, v{v}\ns_waitcnt lgkmcnt(0)\n{op} v{v}, v{v}, v{t}")
def b1(g):
    srd(g,12,56,1835008)
    g(f"""s_sub_u32 s4, s2, 448
    s_lshr_b32 s5, s4, 2
    s_and_b32 s4, s4, 3
    v_and_b32 v1, 15, v0
    v_bfe_u32 v2, v0, 4, 2
    v_lshrrev_b32 v3, 6, v0
    s_nop 0
    v_readfirstlane_b32 s7, v3
    v_mov_b32 v10, 0
    v_mov_b32 v11, 0
    v_lshlrev_b32 v4, 2, v0
    ds_write_b32 v4, v10 offset:{QL}
    v_mul_u32_u24 v4, 240, v0
    ds_write_b64 v4, v[10:11] offset:224
    s_mul_i32 s3, s5, {32*896}
    v_mul_u32_u24 v4, 896, v1
    v_lshl_add_u32 v4, v2, 4, v4
    v_add_u32 v4, s3, v4
    s_mov_b32 s6, s7
    s_waitcnt lgkmcnt(0)
    s_barrier""")
    g.lab("b1_tl")
    g(f"""s_min_u32 s20, s6, 20
    s_mul_hi_u32 s21, s20, 0x24924925
    s_mul_i32 s22, s21, 7
    s_sub_u32 s22, s20, s22
    s_mul_i32 s23, s21, 448
    s_mul_i32 s3, s4, 112
    s_add_u32 s23, s23, s3
    s_lshl_b32 s3, s22, 4
    s_add_u32 s23, s23, s3
    s_mul_i32 s23, s23, 896
    s_add_u32 s23, s23, {WS_WQKVT}
    v_mul_u32_u24 v5, 896, v1
    v_lshl_add_u32 v5, v2, 4, v5
    v_add_u32 v5, s23, v5""")
    for r in range(16,24): g(f"v_mov_b32 v{r}, 0")
    g(f"v_add_u32 v6, {16*896}, v4")
    for hb in range(2):
        for j in range(7):
            k=hb*7+j; R=64+12*j
            g(f"buffer_load_dwordx4 v[{R}:{R+3}], v4, s[12:15], 0 offen offset:{64*k}\nbuffer_load_dwordx4 v[{R+4}:{R+7}], v6, s[12:15], 0 offen offset:{64*k}\nbuffer_load_dwordx4 v[{R+8}:{R+11}], v5, s[8:11], 0 offen offset:{64*k}")
        for j in range(7):
            R=64+12*j
            g(f"s_waitcnt vmcnt({3*(6-j)})\nv_mfma_f32_16x16x32_bf16 v[16:19], v[{R}:{R+3}], v[{R+8}:{R+11}], v[16:19]\nv_mfma_f32_16x16x32_bf16 v[20:23], v[{R+4}:{R+7}], v[{R+8}:{R+11}], v[20:23]")
    g("s_nop 7\ns_nop 7\ns_cmp_eq_u32 s21, 2\ns_cbranch_scc1 b1_v")
    g(f"""s_mul_i32 s3, s21, 7680
    s_lshl_b32 s22, s22, 5
    s_add_u32 s3, s3, s22
    v_mul_u32_u24 v6, 960, v2
    v_lshl_add_u32 v6, v1, 1, v6
    v_add_u32 v6, s3, v6""")
    for m in range(2):
        for r in range(4):
            g(f"v_cvt_pk_bf16_f32 v24, v{16+4*m+r}, v{16+4*m+r}\nds_write_b16 v6, v24 offset:{(16*m+r)*240}")
    g("s_branch b1_nx")
    g.lab("b1_v")
    g(f"s_lshl_b32 s3, s22, 10\nv_lshlrev_b32 v6, 6, v1\nv_lshl_add_u32 v6, v2, 3, v6\nv_add_u32 v6, s3, v6")
    for m in range(2):
        g(f"v_cvt_pk_bf16_f32 v24, v{16+4*m}, v{17+4*m}\nv_cvt_pk_bf16_f32 v25, v{18+4*m}, v{19+4*m}\nds_write_b64 v6, v[24:25] offset:{VT+32*m}")
    g.lab("b1_nx")
    g("s_add_u32 s6, s6, 4\ns_cmp_lt_u32 s6, 24\ns_cbranch_scc1 b1_tl\ns_waitcnt lgkmcnt(0)\ns_barrier")
    g(f"""v_and_b32 v60, 63, v0
    v_xor_b32 v61, 32, v60
    v_xor_b32 v60, 16, v60
    v_lshlrev_b32 v60, 2, v60
    v_lshlrev_b32 v61, 2, v61
    s_lshl_b32 s3, s4, 2
    s_add_u32 s20, s3, s7
    s_lshl_b32 s3, s20, 11
    s_add_u32 s3, s3, {WS_WPHIT}
    v_lshlrev_b32 v5, 6, v1
    v_lshl_add_u32 v5, v2, 4, v5
    v_add_u32 v5, s3, v5
    buffer_load_dwordx4 v[40:43], v5, s[8:11], 0 offen
    buffer_load_dwordx4 v[44:47], v5, s[8:11], 0 offen offset:1024
    s_mul_i32 s3, s7, 56
    v_mul_u32_u24 v6, 240, v1
    v_lshl_add_u32 v6, v2, 4, v6
    v_add_u32 v6, s3, v6
    v_cmp_eq_u32 s[22:23], 3, v2
    v_lshlrev_b32 v7, 3, v2""")
    for part in range(2):
        for st in range(2):
            o=part*7680+st*3840
            g(f"""ds_read_b64 v[24:25], v6 offset:{o}
            ds_read_b64 v[26:27], v6 offset:{o+8}
            s_waitcnt vmcnt(0) lgkmcnt(0)
            v_mfma_f32_16x16x32_bf16 v[16:19], v[40:43], v[24:27], 0
            v_mfma_f32_16x16x32_bf16 v[20:23], v[44:47], v[24:27], 0
            s_nop 7""")
            for r in range(8): rne(g,16+r,28)
            g("v_max3_f32 v28, v16, v17, v18\nv_max_f32 v28, v28, v19\nv_min3_f32 v29, v16, v17, v18\nv_min_f32 v29, v29, v19")
            g("v_max3_f32 v30, v20, v21, v22\nv_max3_f32 v30, v30, v23, v28\nv_min3_f32 v31, v20, v21, v22\nv_min3_f32 v31, v31, v23, v29\nv_cndmask_b32 v28, v30, v28, s[22:23]\nv_cndmask_b32 v29, v31, v29, s[22:23]")
            xred(g,28,"v_max_f32",30); xred(g,29,"v_min_f32",30)
            g("v_mov_b32 v30, 0\nv_mov_b32 v31, 0")
            for r in range(8):
                g(f"v_sub_f32 v{32+r}, v{16+r}, v28\nv_sub_f32 v{48+r}, v29, v{16+r}\nv_mul_f32 v{32+r}, 0x3fb8aa3b, v{32+r}\nv_mul_f32 v{48+r}, 0x3fb8aa3b, v{48+r}\nv_exp_f32 v{32+r}, v{32+r}\nv_exp_f32 v{48+r}, v{48+r}\ns_nop 0")
                if r>=4: g(f"v_cndmask_b32 v{32+r}, v{32+r}, 0, s[22:23]\nv_cndmask_b32 v{48+r}, v{48+r}, 0, s[22:23]")
                g(f"v_add_f32 v30, v30, v{32+r}\nv_add_f32 v31, v31, v{48+r}")
            xred(g,30,"v_add_f32",28); xred(g,31,"v_add_f32",28)
            g("v_rcp_f32 v30, v30\nv_rcp_f32 v31, v31\ns_nop 0")
            if part==0:
                g(f"s_lshl_b32 s3, s5, 5\nv_add_u32 v8, {16*st}, v1\nv_add_u32 v8, s3, v8\nv_lshlrev_b32 v8, 11, v8\ns_lshl_b32 s3, s20, 7\ns_add_u32 s3, s3, {WS_PHIQ}\nv_add_u32 v8, s3, v8\nv_add_u32 v8, v8, v7"); es=2
            else:
                g(f"s_lshl_b32 s3, s7, 12\nv_lshlrev_b32 v8, 1, v1\nv_add_u32 v8, s3, v8\nv_lshl_add_u32 v8, v2, 8, v8"); es=64
            g(f"v_add_u32 v9, {(56-28)*es}, v8\nv_cndmask_b32 v9, v8, v9, s[22:23]\nv_add_u32 v10, {4*es}, v8\nv_cndmask_b32 v10, v8, v10, s[22:23]")
            for r in range(8):
                a=8 if r<4 else 9; b=8 if r<4 else 10; f=(r&3)+16*(r>>2)
                g(f"v_mul_f32 v{32+r}, v{32+r}, v30\nv_mul_f32 v{48+r}, v{48+r}, v31\nv_cvt_pk_bf16_f32 v{32+r}, v{32+r}, v{32+r}\nv_cvt_pk_bf16_f32 v{48+r}, v{48+r}, v{48+r}")
                if part==0: g(f"buffer_store_short v{32+r}, v{a}, s[8:11], 0 offen offset:{f*2}\nbuffer_store_short v{48+r}, v{b}, s[8:11], 0 offen offset:{(f+28)*2}")
                else: g(f"ds_write_b16 v{a}, v{32+r} offset:{PH+st*32+f*64}\nds_write_b16 v{b}, v{48+r} offset:{PH+st*32+(f+28)*64}")
    g(f"""s_waitcnt lgkmcnt(0)
    s_barrier
    s_lshl_b32 s3, s7, 12
    v_lshlrev_b32 v5, 6, v1
    v_lshl_add_u32 v5, v2, 4, v5
    v_add_u32 v6, s3, v5
    s_mul_i32 s3, s7, {28*64}
    v_add_u32 v5, s3, v5
    ds_read_b128 v[32:35], v5 offset:{VT}
    ds_read_b128 v[36:39], v5 offset:{VT+1024}
    v_cmp_lt_u32 vcc, 11, v1
    v_mov_b32 v8, 0x3f803f80
    s_lshl_b32 s3, s20, 13
    s_add_u32 s3, s3, {WS_KV}
    v_lshlrev_b32 v7, 9, v2
    v_lshl_add_u32 v7, v1, 2, v7
    v_add_u32 v7, s3, v7
    s_waitcnt lgkmcnt(0)""")
    for r in range(4): g(f"v_cndmask_b32 v{36+r}, v{36+r}, v8, vcc")
    for ft in range(4):
        g(f"ds_read_b128 v[24:27], v6 offset:{PH+ft*1024}\ns_waitcnt lgkmcnt(0)\nv_mfma_f32_16x16x32_bf16 v[16:19], v[24:27], v[32:35], 0\nv_mfma_f32_16x16x32_bf16 v[20:23], v[24:27], v[36:39], 0\ns_nop 7")
        for dt in range(2):
            for r in range(4): g(f"buffer_atomic_add_f32 v{16+4*dt+r}, v7, s[8:11], 0 offen offset:{r*128+dt*64}")
        g('v_add_u32 v7, 2048, v7')
```
